```python
import torch

def _softmax(x, axis=-1):
    return torch.softmax(x, dim=axis)
def _gelu(x):
    return torch.nn.functional.gelu(x, approximate="tanh")
def _silu(x):
    return torch.nn.functional.silu(x)
def _sigmoid(x):
    return torch.sigmoid(x)
def _layernorm(x, axis=-1, eps=1e-5):
    m = x.mean(dim=axis, keepdim=True)
    v = x.var(dim=axis, keepdim=True, unbiased=False)
    return (x - m) / torch.sqrt(v + eps)
def _scatter_add(tgt, idx, src, axis=0):
    return tgt.clone().index_add_(axis, idx, src)
def _segment_sum(src, seg, n):
    out = torch.zeros((n,) + src.shape[1:], dtype=src.dtype)
    return out.index_add_(0, seg, src)
def _pad(x, pw):
    flat = tuple(v for pair in reversed(pw) for v in pair)
    return torch.nn.functional.pad(x, flat)

kernel_name = 'gather_scatter__molecular_angular_gemnet__graph'

def setup_inputs():

    _w = (lambda a: (lambda t: t.to(torch.bfloat16) if t.is_floating_point() else t)(torch.as_tensor(a)))
    N, deg, De, L = 25000, 32, 4, 1
    E = N * deg
    T = E * deg
    NR = 8
    dist = torch.rand(E).to(float)
    angle = (torch.rand(T) * torch.pi).to(float)
    centers = torch.linspace(0.0, 1.0, NR).to(float)
    ang_freq = torch.arange(1, L + 1).to(float)
    return {
        "m": _w((lambda *s: torch.randn(*s, dtype=torch.bfloat16) * 0.05)(E, De)),
        "idx_in": _w((lambda lo, hi, *s: torch.randint(lo, hi, s))(0, E, T).to(torch.int64)),
        "idx_out": _w((lambda lo, hi, *s: torch.randint(lo, hi, s))(0, E, T).to(torch.int64)),
        "dist": _w(dist),
        "angle": _w(angle),
        "centers": _w(centers),
        "ang_freq": _w(ang_freq),
        "w_rbf": _w((lambda *s: torch.randn(*s, dtype=torch.bfloat16) * 0.2)(NR, De)),
        "w_sbf": _w((lambda *s: torch.randn(*s, dtype=torch.bfloat16) * 0.2)(NR * L, De)),
        "w_down": _w((lambda *s: torch.randn(*s, dtype=torch.bfloat16) * 0.2)(De, De)),
        "w_up": _w((lambda *s: torch.randn(*s, dtype=torch.bfloat16) * 0.2)(De, De)),
    }

def reference(m, idx_in, idx_out, dist, angle, centers, ang_freq, w_rbf, w_sbf, w_down, w_up):
    E, De = m.shape[0], m.shape[1]
    NR = centers.shape[0]
    L = ang_freq.shape[0]
    rbf = torch.exp(-10.0 * (dist[:, None] - centers[None, :]) ** 2)
    cbf = torch.cos(ang_freq[None, :] * angle[:, None])
    rbf_t = rbf[idx_out]
    sbf = torch.reshape(rbf_t[:, :, None] * cbf[:, None, :], (-1, NR * L))
    x = (m[idx_in] @ w_down) * (sbf @ w_sbf)
    agg = _segment_sum(x, idx_out, E)
    return m + (agg @ w_up) * (rbf @ w_rbf)
```

```python
import sys, os

E = 800000
T = 25600000
TT = 14336
NTILES = (T + TT - 1) // TT
TSTRIDE = 147456
NWG = 256
MAX_OFF = NTILES * TSTRIDE
WS_BYTES = 409600000
HI = 0xFFFF0000

class Cfg:
    theta = 400000
    ld_nt = " nt"
    st_nt = " nt"
    rd_nt = " nt"
    g_pol = ""

class Asm:
    def __init__(self):
        self.L = []
    def __call__(self, s):
        self.L.append("    " + s)
    def lab(self, s):
        self.L.append(s + ":")
    def c(self, s):
        self.L.append("    ; " + s)
    def text(self):
        return "\n".join(self.L) + "\n"

def vr(b, n):
    return f"v[{b}:{b+n-1}]"
def sr(b, n):
    return f"s[{b}:{b+n-1}]"

def srd(a, d, lo, hi, nbytes):
    a(f"s_mov_b32 s{d}, s{lo}")
    a(f"s_and_b32 s{d+1}, s{hi}, 0xffff")
    a(f"s_mov_b32 s{d+2}, {nbytes}")
    a(f"s_mov_b32 s{d+3}, 0x00020000")

def gen_part(cfg):
    a = Asm()
    CNT = 0
    TAB = 1024
    MISC = 5120
    MXW = 5376
    STAGE0 = 6144
    LDS_BYTES = STAGE0 + TSTRIDE
    S_IN, S_OUT, S_ANG, S_M, S_WS = 4, 8, 12, 16, 20
    MV = 24
    VAL = 52
    VALN = 60
    S_THETA, S_HI, S_LIMIT, S_TILE, S_TOTAL, S_TB, S_WAVE, S_T0, S_T1 = 68, 69, 70, 71, 72, 73, 74, 75, 76
    S_TOFF = 77
    S_EX = 78
    RIN, ROUT, RANG = 4, 18, 32
    A, X, Y, TMP = 40, 68, 82, 96
    V_T16, V_K = 1, 2
    grp = [0]*4 + [1]*4 + [2]*4 + [3]*2
    def mv(r): return sr(MV + 2*r, 2)
    def val(g): return sr(VAL + 2*g, 2)
    def valn(g): return sr(VALN + 2*g, 2)

    def raw_offsets():
        a(f"s_mul_i32 s{S_TB}, s{S_T0}, {TT*4}")
        a(f"v_add_u32 v{TMP}, s{S_TB}, v{V_T16}")
        a(f"v_add_u32 v{TMP+1}, 16384, v{TMP}")
        a(f"v_add_u32 v{TMP+2}, 32768, v{TMP}")
        a(f"v_lshrrev_b32 v{TMP+3}, 1, v{V_T16}")
        a(f"s_add_u32 s{S_TB}, s{S_TB}, 49152")
        a(f"v_add_u32 v{TMP+3}, s{S_TB}, v{TMP+3}")
        for g in range(4):
            a(f"v_cmp_gt_u32 {valn(g)}, s{S_LIMIT}, v{TMP+g}")
    def raw_in_loads():
        for g in range(3):
            a(f"buffer_load_dwordx4 {vr(RIN+4*g,4)}, v{TMP+g}, {sr(S_IN,4)}, 0 offen{cfg.ld_nt}")
        a(f"buffer_load_dwordx2 {vr(RIN+12,2)}, v{TMP+3}, {sr(S_IN,4)}, 0 offen{cfg.ld_nt}")
    def raw_out_loads():
        for g in range(3):
            a(f"buffer_load_dwordx4 {vr(ROUT+4*g,4)}, v{TMP+g}, {sr(S_OUT,4)}, 0 offen{cfg.ld_nt}")
        a(f"buffer_load_dwordx2 {vr(ROUT+12,2)}, v{TMP+3}, {sr(S_OUT,4)}, 0 offen{cfg.ld_nt}")
        for g in range(4):
            a(f"v_lshrrev_b32 v{TMP+g}, 1, v{TMP+g}")
        for g in range(3):
            a(f"buffer_load_dwordx2 {vr(RANG+2*g,2)}, v{TMP+g}, {sr(S_ANG,4)}, 0 offen{cfg.ld_nt}")
        a(f"buffer_load_dword v{RANG+6}, v{TMP+3}, {sr(S_ANG,4)}, 0 offen{cfg.ld_nt}")

    a.lab("part_kernel")
    a(f"s_cmp_ge_u32 s2, {NWG}")
    a("s_cbranch_scc1 A_end")
    a("s_load_dwordx4 s[80:83], s[0:1], 0")
    a("s_load_dwordx2 s[84:85], s[0:1], 16")
    a("s_load_dwordx2 s[86:87], s[0:1], 32")
    a("s_load_dwordx2 s[88:89], s[0:1], 48")
    a("s_load_dwordx2 s[90:91], s[0:1], 104")
    a(f"v_lshlrev_b32 v{V_T16}, 4, v0")
    a("v_lshrrev_b32 v3, 6, v0")
    a("s_nop 0")
    a(f"v_readfirstlane_b32 s{S_WAVE}, v3")
    a("s_waitcnt lgkmcnt(0)")
    a("s_load_dword s92, s[88:89], 0")
    srd(a, S_M, 80, 81, E*8)
    srd(a, S_IN, 82, 83, T*4)
    srd(a, S_OUT, 84, 85, T*4)
    srd(a, S_ANG, 86, 87, T*2)
    srd(a, S_WS, 90, 91, WS_BYTES)
    a(f"s_mov_b32 s{S_THETA}, {cfg.theta}")
    a(f"s_mov_b32 s{S_HI}, 0x{HI:08x}")
    a(f"s_mov_b32 s{S_LIMIT}, {T*4}")
    a(f"s_mov_b32 s{S_TILE}, s2")
    a(f"s_mov_b32 s{S_T0}, s2")
    raw_offsets()
    raw_in_loads()
    raw_out_loads()
    a(f"s_mul_i32 s{S_T1}, s2, 3125")
    a(f"s_lshr_b32 s{S_T1}, s{S_T1}, 1")
    a(f"s_lshl_b32 s{S_T1}, s{S_T1}, 4")
    a(f"v_add_u32 v{TMP+4}, s{S_T1}, v{V_T16}")
    a(f"v_add_u32 v{TMP+5}, 16384, v{TMP+4}")
    a(f"buffer_load_dwordx4 {vr(A,4)}, v{TMP+4}, {sr(S_M,4)}, 0 offen")
    a(f"buffer_load_dwordx4 {vr(A+4,4)}, v{TMP+5}, {sr(S_M,4)}, 0 offen")
    a(f"v_mov_b32 v{TMP+6}, 0")
    a(f"v_lshlrev_b32 v{TMP+7}, 2, v0")
    a(f"v_cmp_gt_u32 vcc, 256, v0")
    a(f"s_and_saveexec_b64 {sr(S_EX,2)}, vcc")
    a(f"ds_write_b32 v{TMP+7}, v{TMP+6} offset:{CNT}")
    a(f"ds_write_b32 v{TMP+7}, v{TMP+6} offset:{MISC}")
    a(f"s_mov_b64 exec, {sr(S_EX,2)}")
    a("s_waitcnt lgkmcnt(0)")
    a(f"s_and_b32 s92, s92, 0xffff")
    a(f"s_lshl_b32 s92, s92, 16")
    a(f"v_mov_b32 v{V_K}, s92")
    a(f"v_mul_f32 v{V_K}, 0.15915494, v{V_K}")
    a("s_barrier")
    a("s_waitcnt vmcnt(0)")
    a(f"s_mov_b32 s{S_T1}, 0x7fff7fff")
    for i in range(8):
        a(f"v_and_b32 v{A+i}, s{S_T1}, v{A+i}")
    for i in (4, 2, 1):
        for j in range(i):
            a(f"v_pk_max_u16 v{A+j}, v{A+j}, v{A+j+i}")
    a(f"v_lshrrev_b32 v{A+1}, 16, v{A}")
    a(f"v_and_b32 v{A}, 0xffff, v{A}")
    a(f"v_max_u32 v{A}, v{A}, v{A+1}")
    a(f"v_mov_b32 v{A+1}, {MXW}")
    a(f"ds_max_u32 v{A+1}, v{A}")
    a("s_waitcnt lgkmcnt(0)")
    a("s_barrier")
    a(f"s_cmp_lg_u32 s{S_WAVE}, 0")
    a("s_cbranch_scc1 A_nomax")
    a(f"ds_read_b32 v{A}, v{A+1}")
    a(f"s_lshl_b32 s{S_T1}, s2, 2")
    a(f"s_add_u32 s{S_T1}, s{S_T1}, {MAX_OFF}")
    a(f"v_mov_b32 v{A+2}, s{S_T1}")
    a("s_waitcnt lgkmcnt(0)")
    a(f"v_cmp_eq_u32 vcc, 0, v0")
    a(f"s_and_saveexec_b64 {sr(S_EX,2)}, vcc")
    a(f"buffer_store_dword v{A}, v{A+2}, {sr(S_WS,4)}, 0 offen")
    a(f"s_mov_b64 exec, {sr(S_EX,2)}")
    a.lab("A_nomax")

    a.lab("A_tile")
    for g in range(4):
        a(f"s_mov_b64 {val(g)}, {valn(g)}")
    t = TMP + 4
    a.c("phase 2a: bucket, type, rank atomics, gathers")
    for r in range(14):
        g = grp[r]
        i_, o_ = RIN + r, ROUT + r
        p = t + 8*(r % 2)
        if r == 0 or grp[r-1] != g:
            a(f"s_mov_b64 exec, {val(g)}")
        a(f"v_cmp_gt_u32 {mv(r)}, s{S_THETA}, v{i_}")
        a(f"v_lshrrev_b32 v{p}, 4, v{o_}")
        a(f"v_lshrrev_b32 v{p+1}, 8, v{o_}")
        a(f"v_and_b32 v{p}, 0x3fc, v{p}")
        a(f"v_bfi_b32 v{o_}, 63, v{o_}, v{p+1}")
        a(f"v_cndmask_b32 v{p+2}, 16, 0, {mv(r)}")
        a(f"v_lshlrev_b32 v{p+4}, 18, v{p}")
        a(f"v_lshlrev_b32_e64 v{p+3}, v{p+2}, 1")
        a(f"v_lshl_add_u32 v{X+r}, v{p+2}, 15, v{p+4}")
        a(f"ds_add_rtn_u32 v{Y+r}, v{p}, v{p+3} offset:{CNT}")
        a(f"v_lshl_or_b32 v{A+2*r}, v{o_}, 20, v{i_}")
        a(f"v_lshlrev_b32 v{p+5}, 3, v{i_}")
        a(f"s_mov_b64 exec, {mv(r)}")
        a(f"buffer_load_dwordx2 {vr(A+2*r,2)}, v{p+5}, {sr(S_M,4)}, 0 offen{cfg.g_pol}")
        a(f"s_mov_b64 exec, {val(g)}")
    a("s_mov_b64 exec, -1")
    a(f"s_add_u32 s{S_T0}, s{S_TILE}, {NWG}")
    raw_offsets()
    raw_in_loads()
    a.c("phase 2b: ranks, cos")
    a("s_waitcnt lgkmcnt(0)")
    for r0 in range(0, 14, 2):
        for r in (r0, r0+1):
            g = grp[r]
            p = t + 8*(r % 2)
            k = r - 4*g
            raw = RANG + 2*g + (k >> 1)
            if k & 1:
                a(f"v_and_b32 v{p}, s{S_HI}, v{raw}")
            else:
                a(f"v_lshlrev_b32 v{p}, 16, v{raw}")
            a(f"v_cndmask_b32 v{p+1}, 16, 0, {mv(r)}")
            a(f"v_mul_f32 v{p}, v{V_K}, v{p}")
            a(f"v_bfe_u32 v{p+1}, v{Y+r}, v{p+1}, 16")
            a(f"v_fract_f32 v{p}, v{p}")
            a(f"v_lshl_or_b32 v{Y+r}, v{p+1}, 1, v{X+r}")
            a(f"v_cos_f32 v{p}, v{p}")
        for r in (r0, r0+1):
            p = t + 8*(r % 2)
            a(f"v_cvt_pk_bf16_f32 v{p}, v{p}, v{p}")
            a(f"v_and_or_b32 v{p+2}, v{p}, s{S_HI}, v{ROUT+r}")
            a(f"v_cndmask_b32 v{X+r}, v{p}, v{p+2}, {mv(r)}")
    raw_out_loads()
    a("s_barrier")
    a.c("scan by wave 0")
    a(f"s_cmp_lg_u32 s{S_WAVE}, 0")
    a("s_cbranch_scc1 A_noscan")
    c0 = TMP
    z = TMP + 4
    a(f"ds_read_b128 {vr(c0,4)}, v{V_T16} offset:{CNT}")
    for q in range(4):
        a(f"v_mov_b32 v{z+q}, 0")
    a(f"ds_write_b128 v{V_T16}, {vr(z,4)} offset:{CNT}")
    a("s_waitcnt lgkmcnt(0)")
    nV = TMP + 8; nG = TMP + 12; st = TMP + 16; tot = TMP + 20; inc = TMP + 21; e = TMP + 24; h = TMP + 28
    for q in range(4):
        a(f"v_and_b32 v{nV+q}, 0xffff, v{c0+q}")
        a(f"v_lshrrev_b32 v{nG+q}, 16, v{c0+q}")
    for q in range(4):
        a(f"v_mul_u32_u24 v{z+q}, 6, v{nG+q}")
        a(f"v_mad_u32_u24 v{z+q}, v{nV+q}, 10, v{z+q}")
        a(f"v_add_u32 v{z+q}, 7, v{z+q}")
        a(f"v_and_b32 v{z+q}, -8, v{z+q}")
    a(f"v_mov_b32 v{st}, 0")
    a(f"v_mov_b32 v{st+1}, v{z}")
    a(f"v_add_u32 v{st+2}, v{st+1}, v{z+1}")
    a(f"v_add_u32 v{st+3}, v{st+2}, v{z+2}")
    a(f"v_add_u32 v{tot}, v{st+3}, v{z+3}")
    a(f"v_mov_b32 v{inc}, v{tot}")
    for d in ("row_shr:1 row_mask:0xf", "row_shr:2 row_mask:0xf", "row_shr:4 row_mask:0xf", "row_shr:8 row_mask:0xf",
              "row_bcast:15 row_mask:0xa", "row_bcast:31 row_mask:0xc"):
        a("s_nop 1")
        a(f"v_add_u32_dpp v{inc}, v{inc}, v{inc} {d} bank_mask:0xf")
    a(f"v_lshlrev_b32 v{tot+2}, 2, v0")
    a(f"ds_write_b32 v{tot+2}, v{inc} offset:{MISC}")
    a(f"v_sub_u32 v{tot}, v{inc}, v{tot}")
    a(f"v_add_u32 v{tot}, 2048, v{tot}")
    a(f"v_lshlrev_b32 v{tot+2}, 6, v0")
    a(f"v_lshlrev_b32 v{tot+3}, 5, v0")
    for q in range(4):
        a(f"v_add_u32 v{st+q}, v{tot}, v{st+q}")
        a(f"v_add_u32 v{e}, {STAGE0}, v{st+q}")
        a(f"v_lshl_add_u32 v{e+2}, v{nV+q}, 3, v{e}")
        a(f"v_lshl_add_u32 v{e+1}, v{nG+q}, 2, v{e+2}")
        a(f"v_lshl_add_u32 v{e+3}, v{nV+q}, 1, v{e+1}")
        a(f"ds_write_b128 v{tot+2}, {vr(e,4)} offset:{TAB+16*q}")
        a(f"v_lshl_or_b32 v{h}, v{nV+q}, 18, v{st+q}")
        a(f"v_mov_b32 v{h+1}, v{nG+q}")
        a(f"ds_write_b64 v{tot+3}, {vr(h,2)} offset:{STAGE0+8*q}")
    a("s_waitcnt lgkmcnt(0)")
    a.lab("A_noscan")
    a("s_barrier")
    a.c("scatter")
    P = TMP
    u = TMP + 28
    for r in range(14):
        a(f"v_lshrrev_b32 v{u + (r % 4)}, 16, v{Y+r}")
        a(f"ds_read_b64 {vr(P+2*r,2)}, v{u + (r % 4)} offset:{TAB}")
    a(f"v_mov_b32 v3, {MISC + 63*4}")
    a(f"ds_read_b32 v39, v3")
    for r in range(14):
        a(f"s_waitcnt vmcnt({13 - r + 12})")
        a(f"s_mov_b64 exec, {mv(r)}")
        a0, a1 = A + 2*r, A + 2*r + 1
        a(f"v_and_b32 v3, s{S_HI}, v{X+r}")
        a(f"v_lshlrev_b32 v{u}, 16, v{a0}")
        a(f"v_and_b32 v{u+1}, s{S_HI}, v{a0}")
        a(f"v_lshlrev_b32 v{u+2}, 16, v{a1}")
        a(f"v_and_b32 v{u+3}, s{S_HI}, v{a1}")
        for k in range(4):
            a(f"v_mul_f32 v{u+k}, v3, v{u+k}")
        a(f"v_cvt_pk_bf16_f32 v{a0}, v{u}, v{u+1}")
        a(f"v_cvt_pk_bf16_f32 v{a1}, v{u+2}, v{u+3}")
    a("s_mov_b64 exec, -1")
    a("s_waitcnt lgkmcnt(0)")
    a(f"v_readfirstlane_b32 s{S_TOTAL}, v39")
    for r in range(14):
        g = grp[r]
        a0 = A + 2*r
        w = u + 2*(r % 2)
        a(f"v_and_b32 v{Y+r}, 0xffff, v{Y+r}")
        a(f"s_mov_b64 exec, {mv(r)}")
        a(f"v_lshl_add_u32 v{w}, v{Y+r}, 2, v{P+2*r}")
        a(f"ds_write_b64 v{w}, {vr(a0,2)}")
        a(f"s_andn2_b64 exec, {val(g)}, {mv(r)}")
        a(f"v_lshl_add_u32 v{w}, v{Y+r}, 1, v{P+2*r}")
        a(f"ds_write_b32 v{w}, v{a0}")
        a(f"s_mov_b64 exec, {val(g)}")
        a(f"v_add_u32 v{w+1}, v{Y+r}, v{P+2*r+1}")
        a(f"ds_write_b16 v{w+1}, v{X+r}")
        a("s_mov_b64 exec, -1")
    a(f"s_add_u32 s{S_TOTAL}, s{S_TOTAL}, 2048")
    a("s_waitcnt lgkmcnt(0)")
    a("s_barrier")
    a.c("copy out")
    a(f"s_mul_i32 s{S_TOFF}, s{S_TILE}, {TSTRIDE}")
    D = A
    O = TMP
    for r in range(9):
        a(f"v_add_u32 v{O+r}, {r*16384}, v{V_T16}")
        a(f"v_cmp_gt_u32 {mv(r)}, s{S_TOTAL}, v{O+r}")
    for r in range(9):
        if r >= 7:
            a(f"s_cmp_le_u32 s{S_TOTAL}, {r*16384}")
            a(f"s_cbranch_scc1 A_rd_done")
        a(f"v_add_u32 v{O+10+(r%2)}, {STAGE0}, v{O+r}")
        a(f"s_mov_b64 exec, {mv(r)}")
        a(f"ds_read_b128 {vr(D+4*r,4)}, v{O+10+(r%2)}")
        a("s_mov_b64 exec, -1")
    a.lab("A_rd_done")
    a("s_waitcnt vmcnt(0) lgkmcnt(0)")
    for r in range(9):
        if r >= 7:
            a(f"s_cmp_le_u32 s{S_TOTAL}, {r*16384}")
            a(f"s_cbranch_scc1 A_st_done")
        a(f"s_mov_b64 exec, {mv(r)}")
        a(f"buffer_store_dwordx4 {vr(D+4*r,4)}, v{O+r}, {sr(S_WS,4)}, s{S_TOFF} offen{cfg.st_nt}")
    a.lab("A_st_done")
    a("s_mov_b64 exec, -1")
    a(f"s_add_u32 s{S_TILE}, s{S_TILE}, {NWG}")
    a(f"s_cmp_lt_u32 s{S_TILE}, {NTILES}")
    a("s_cbranch_scc1 A_tile")
    a.lab("A_end")
    a("s_endpgm")
    return a.text(), LDS_BYTES, 128, 96

def gen_acc(cfg):
    a = Asm()
    PLANE = 3136*8
    LDS_BYTES = 4*PLANE
    NSEG = (NTILES + 15)//16
    K = 4
    S_WS, S_M = 4, 8
    S_HDR = 12
    S_K, S_I0, S_TB, S_WAVE, S_B, S_HI, S_SCALE, S_INV = 16, 17, 18, 19, 20, 21, 22, 23
    S_H0, S_H1, S_NV, S_N, S_BASE, S_T, S_U = 24, 25, 26, 27, 28, 29, 30
    FLAG = 32
    MSK = 36
    S_EX = 84
    def mval(b, c): return sr(MSK + 16*b + 4*c, 2)
    def mv(b, c): return sr(MSK + 16*b + 4*c + 2, 2)
    V_LANE, V_SCALE, V_HA0, V_HA1, V_HB0, V_HB1 = 1, 2, 4, 5, 6, 7
    CH = 8
    def rA(b, c): return CH + 16*b + 4*c
    def rH(b, c): return CH + 16*b + 4*c + 2
    def rM(b, c): return CH + 16*b + 4*c + 3
    TMP = 56

    a.lab("acc_kernel")
    a(f"s_cmp_ge_u32 s2, {NWG}")
    a("s_cbranch_scc1 P_end")
    a("s_load_dwordx2 s[86:87], s[0:1], 0")
    a("s_load_dwordx2 s[88:89], s[0:1], 104")
    a("v_and_b32 v1, 63, v0")
    a("v_lshrrev_b32 v3, 6, v0")
    a("s_nop 0")
    a(f"v_readfirstlane_b32 s{S_WAVE}, v3")
    a(f"s_and_b32 s{S_B}, s2, 7")
    a(f"s_lshl_b32 s{S_B}, s{S_B}, 5")
    a(f"s_lshr_b32 s{S_T}, s2, 3")
    a(f"s_add_u32 s{S_B}, s{S_B}, s{S_T}")
    a(f"s_mov_b32 s{S_HI}, 0x{HI:08x}")
    a("s_waitcnt lgkmcnt(0)")
    srd(a, S_M, 86, 87, E*8)
    srd(a, S_WS, 88, 89, WS_BYTES)
    srd(a, S_HDR, 88, 89, NTILES*TSTRIDE)
    a(f"v_lshlrev_b32 v{TMP}, 4, v{V_LANE}")
    a(f"v_add_u32 v{TMP}, s{S_WAVE}, v{TMP}")
    a(f"s_mov_b32 s{S_T}, {TSTRIDE}")
    a(f"v_mul_lo_u32 v{TMP}, v{TMP}, s{S_T}")
    a(f"s_lshl_b32 s{S_U}, s{S_B}, 3")
    a(f"v_add_u32 v{TMP}, s{S_U}, v{TMP}")
    a(f"v_add_u32 v{TMP+1}, {1024*TSTRIDE}, v{TMP}")
    a(f"buffer_load_dwordx2 {vr(V_HA0,2)}, v{TMP}, {sr(S_HDR,4)}, 0 offen")
    a(f"buffer_load_dwordx2 {vr(V_HB0,2)}, v{TMP+1}, {sr(S_HDR,4)}, 0 offen")
    a(f"v_lshlrev_b32 v{TMP+2}, 4, v{V_LANE}")
    a(f"v_add_u32 v{TMP+2}, {MAX_OFF}, v{TMP+2}")
    a(f"buffer_load_dwordx4 {vr(TMP+4,4)}, v{TMP+2}, {sr(S_WS,4)}, 0 offen")
    for i in range(4):
        a(f"v_mov_b32 v{TMP+8+i}, 0")
    a(f"v_lshlrev_b32 v{TMP+12}, 4, v0")
    for r in range(7):
        off = r*16384
        if r == 6:
            a(f"v_cmp_gt_u32 vcc, {(LDS_BYTES - off)//16}, v0")
            a(f"s_and_saveexec_b64 {sr(S_EX,2)}, vcc")
        if off < 65536:
            a(f"ds_write_b128 v{TMP+12}, {vr(TMP+8,4)} offset:{off}")
        else:
            if r == 4:
                a(f"v_add_u32 v{TMP+12}, 65536, v{TMP+12}")
            a(f"ds_write_b128 v{TMP+12}, {vr(TMP+8,4)} offset:{off-65536}")
        if r == 6:
            a(f"s_mov_b64 exec, {sr(S_EX,2)}")
    a("s_waitcnt vmcnt(0)")
    a(f"v_max3_u32 v{TMP+4}, v{TMP+4}, v{TMP+5}, v{TMP+6}")
    a(f"v_max_u32 v{TMP+4}, v{TMP+4}, v{TMP+7}")
    for d in ("row_shr:1 row_mask:0xf", "row_shr:2 row_mask:0xf", "row_shr:4 row_mask:0xf", "row_shr:8 row_mask:0xf",
              "row_bcast:15 row_mask:0xa", "row_bcast:31 row_mask:0xc"):
        a("s_nop 1")
        a(f"v_max_u32_dpp v{TMP+4}, v{TMP+4}, v{TMP+4} {d} bank_mask:0xf")
    a("s_nop 1")
    a(f"v_readlane_b32 s{S_T}, v{TMP+4}, 63")
    a(f"s_lshr_b32 s{S_T}, s{S_T}, 7")
    a(f"s_sub_u32 s{S_T}, 283, s{S_T}")
    a(f"s_min_u32 s{S_T}, s{S_T}, 253")
    a(f"s_lshl_b32 s{S_SCALE}, s{S_T}, 23")
    a(f"s_sub_u32 s{S_T}, 254, s{S_T}")
    a(f"s_lshl_b32 s{S_INV}, s{S_T}, 23")
    a(f"v_mov_b32 v{V_SCALE}, s{S_SCALE}")
    a(f"s_mov_b32 s{S_K}, 0")
    a(f"s_mov_b32 s{S_I0}, 0")
    a(f"s_mul_i32 s{S_TB}, s{S_WAVE}, {TSTRIDE}")
    a("s_waitcnt lgkmcnt(0)")
    a("s_barrier")

    uid = [0]
    def gen_batch(b):
        a(f"s_cmp_ge_u32 s{S_K}, {NSEG}")
        a(f"s_cselect_b32 s{FLAG+b}, 1, 0")
        for c in range(K):
            uid[0] += 1
            p = TMP + 4*(c % 2)
            a(f"v_readlane_b32 s{S_H0}, v{V_HA0}, s{S_K}")
            a(f"v_readlane_b32 s{S_H1}, v{V_HA1}, s{S_K}")
            a(f"v_add_u32 v{p}, s{S_I0}, v{V_LANE}")
            a(f"s_lshr_b32 s{S_NV}, s{S_H0}, 18")
            a(f"s_and_b32 s{S_H0}, s{S_H0}, 0x3ffff")
            a(f"s_add_u32 s{S_N}, s{S_NV}, s{S_H1}")
            a(f"s_add_u32 s{S_BASE}, s{S_TB}, s{S_H0}")
            a(f"v_cmp_gt_u32 {mv(b,c)}, s{S_NV}, v{p}")
            a(f"v_cmp_gt_u32 {mval(b,c)}, s{S_N}, v{p}")
            a(f"s_lshl_b32 s{S_T}, s{S_NV}, 2")
            a(f"s_lshl_b32 s{S_U}, s{S_H1}, 2")
            a(f"v_lshlrev_b32 v{p+1}, 3, v{p}")
            a(f"v_lshl_add_u32 v{p+2}, v{p}, 2, s{S_T}")
            a(f"s_lshl1_add_u32 s{S_U}, s{S_T}, s{S_U}")
            a(f"v_cndmask_b32 v{p+1}, v{p+2}, v{p+1}, {mv(b,c)}")
            a(f"v_lshl_add_u32 v{p+3}, v{p}, 1, s{S_U}")
            a(f"s_mov_b64 exec, {mval(b,c)}")
            a(f"buffer_load_dwordx2 {vr(rA(b,c),2)}, v{p+1}, {sr(S_WS,4)}, s{S_BASE} offen{cfg.rd_nt}")
            a(f"buffer_load_ushort v{rH(b,c)}, v{p+3}, {sr(S_WS,4)}, s{S_BASE} offen{cfg.rd_nt}")
            a("s_mov_b64 exec, -1")
            a(f"s_add_u32 s{S_I0}, s{S_I0}, 64")
            a(f"s_cmp_lt_u32 s{S_I0}, s{S_N}")
            a(f"s_cbranch_scc1 P_same{uid[0]}")
            a(f"s_mov_b32 s{S_I0}, 0")
            a(f"s_add_u32 s{S_K}, s{S_K}, 1")
            a(f"s_add_u32 s{S_TB}, s{S_TB}, {16*TSTRIDE}")
            a(f"s_cmp_lg_u32 s{S_K}, 64")
            a(f"s_cbranch_scc1 P_same{uid[0]}")
            a(f"v_mov_b32 v{V_HA0}, v{V_HB0}")
            a(f"v_mov_b32 v{V_HA1}, v{V_HB1}")
            a("s_nop 0")
            a.lab(f"P_same{uid[0]}")
    def stage_g(b):
        for c in range(K):
            p = TMP + 8 + 4*(c % 2)
            A0, H, M = rA(b,c), rH(b,c), rM(b,c)
            a(f"v_lshlrev_b32 v{p}, 12, v{A0}")
            a(f"v_lshrrev_b32 v{p+1}, 20, v{A0}")
            a(f"v_lshlrev_b32 v{p+2}, 16, v{H}")
            a(f"v_lshrrev_b32 v{p}, 9, v{p}")
            a(f"v_cndmask_b32 v{H}, v{p+1}, v{H}, {mv(b,c)}")
            a(f"v_mul_f32 v{p+2}, s{S_SCALE}, v{p+2}")
            a(f"v_lshlrev_b32 v{H}, 3, v{H}")
            a(f"v_cndmask_b32 v{M}, v{p+2}, v{V_SCALE}, {mv(b,c)}")
            a(f"s_andn2_b64 exec, {mval(b,c)}, {mv(b,c)}")
            a(f"buffer_load_dwordx2 {vr(A0,2)}, v{p}, {sr(S_M,4)}, 0 offen{cfg.g_pol}")
            a("s_mov_b64 exec, -1")
    def stage_p(b):
        for c in range(K):
            p = TMP + 16 + 12*(c % 2)
            A0, I, M = rA(b,c), rH(b,c), rM(b,c)
            a(f"s_waitcnt vmcnt({2*K + (K-1-c)})")
            a(f"s_mov_b64 exec, {mval(b,c)}")
            a(f"v_lshlrev_b32 v{p}, 16, v{A0}")
            a(f"v_and_b32 v{p+2}, s{S_HI}, v{A0}")
            a(f"v_lshlrev_b32 v{p+4}, 16, v{A0+1}")
            a(f"v_and_b32 v{p+6}, s{S_HI}, v{A0+1}")
            for k in range(4):
                a(f"v_mul_f32 v{p+2*k}, v{M}, v{p+2*k}")
            for k in range(4):
                a(f"v_cvt_i32_f32 v{p+2*k}, v{p+2*k}")
            a(f"v_add_u32 v{p+8}, {2*PLANE}, v{I}")
            for k in range(4):
                a(f"v_ashrrev_i32 v{p+2*k+1}, 31, v{p+2*k}")
            a(f"ds_add_u64 v{I}, {vr(p,2)}")
            a(f"ds_add_u64 v{I}, {vr(p+2,2)} offset:{PLANE}")
            a(f"ds_add_u64 v{p+8}, {vr(p+4,2)}")
            a(f"ds_add_u64 v{p+8}, {vr(p+6,2)} offset:{PLANE}")
        a("s_mov_b64 exec, -1")

    gen_batch(0)
    gen_batch(1)
    a("s_waitcnt vmcnt(8)")
    a.lab("P_loop")
    for b in range(3):
        a(f"s_cmp_lg_u32 s{FLAG+b}, 0")
        a("s_cbranch_scc1 P_done")
        stage_g(b)
        gen_batch((b+2) % 3)
        stage_p(b)
    a("s_branch P_loop")
    a.lab("P_done")
    a("s_waitcnt vmcnt(0) lgkmcnt(0)")
    a("s_barrier")
    S_D, S_O = 12, 24
    W_RBF, W_SBF, W_DN, W_UP, S_CEN = 36, 52, 68, 76, 84
    a("s_load_dwordx2 s[28:29], s[0:1], 24")
    a("s_load_dwordx2 s[30:31], s[0:1], 88")
    a("s_load_dwordx4 s[88:91], s[0:1], 56")
    a("s_load_dwordx4 s[92:95], s[0:1], 72")
    a("s_load_dwordx2 s[96:97], s[0:1], 40")
    a("s_waitcnt lgkmcnt(0)")
    srd(a, S_D, 28, 29, E*2)
    srd(a, S_O, 30, 31, E*8)
    a(f"s_load_dwordx16 {sr(W_RBF,16)}, s[88:89], 0")
    a(f"s_load_dwordx16 {sr(W_SBF,16)}, s[90:91], 0")
    a(f"s_load_dwordx8 {sr(W_DN,8)}, s[92:93], 0")
    a(f"s_load_dwordx8 {sr(W_UP,8)}, s[94:95], 0")
    a(f"s_load_dwordx4 {sr(S_CEN,4)}, s[96:97], 0")
    a(f"s_mov_b32 s{S_K}, s{S_WAVE}")
    a("s_waitcnt lgkmcnt(0)")
    S_W = 28
    S_C = 30
    a(f"s_mov_b32 s{S_C}, 0")
    a(f"s_mov_b32 s{S_C+1}, 0x41f00000")
    def wsc(base, idx):
        s = base + idx//2
        if idx & 1:
            a(f"s_and_b32 s{S_W}, s{s}, s{S_HI}")
        else:
            a(f"s_lshl_b32 s{S_W}, s{s}, 16")
    a.lab("P_ep")
    vE, vD, vMm, vS, vR, vRS, vRW, vT = 8, 9, 10, 12, 20, 28, 32, 40
    a(f"s_lshl_b32 s{S_T}, s{S_K}, 14")
    a(f"s_lshl_b32 s{S_U}, s{S_B}, 6")
    a(f"s_add_u32 s{S_T}, s{S_T}, s{S_U}")
    a(f"v_add_u32 v{vE}, s{S_T}, v{V_LANE}")
    a(f"v_lshlrev_b32 v{vT}, 1, v{vE}")
    a(f"v_lshlrev_b32 v{vE}, 3, v{vE}")
    a(f"buffer_load_ushort v{vD}, v{vT}, {sr(S_D,4)}, 0 offen")
    a(f"buffer_load_dwordx2 {vr(vMm,2)}, v{vE}, {sr(S_M,4)}, 0 offen")
    a(f"s_lshl_b32 s{S_T}, s{S_K}, 6")
    a(f"v_add_u32 v{vT+1}, s{S_T}, v{V_LANE}")
    a(f"v_lshlrev_b32 v{vT+1}, 3, v{vT+1}")
    a(f"v_add_u32 v{vT+2}, {2*PLANE}, v{vT+1}")
    a(f"ds_read_b64 {vr(vS,2)}, v{vT+1}")
    a(f"ds_read_b64 {vr(vS+2,2)}, v{vT+1} offset:{PLANE}")
    a(f"ds_read_b64 {vr(vS+4,2)}, v{vT+2}")
    a(f"ds_read_b64 {vr(vS+6,2)}, v{vT+2} offset:{PLANE}")
    a("s_waitcnt lgkmcnt(0)")
    for k in range(4):
        lo, hi = vS+2*k, vS+2*k+1
        a(f"v_cvt_f64_i32 {vr(vT+4,2)}, v{hi}")
        a(f"v_cvt_f64_u32 {vr(vT+6,2)}, v{lo}")
        a(f"v_fma_f64 {vr(vT+4,2)}, {vr(vT+4,2)}, {sr(S_C,2)}, {vr(vT+6,2)}")
        a(f"v_cvt_f32_f64 v{lo}, {vr(vT+4,2)}")
        a(f"v_mul_f32 v{lo}, s{S_INV}, v{lo}")
    a("s_waitcnt vmcnt(0)")
    a(f"v_lshlrev_b32 v{vD}, 16, v{vD}")
    a(f"v_mov_b32 v{vT+8}, 0xc166d4ca")
    for k in range(8):
        wsc(S_CEN, k)
        a(f"v_subrev_f32 v{vR+k}, s{S_W}, v{vD}")
        a(f"v_mul_f32 v{vR+k}, v{vR+k}, v{vR+k}")
        a(f"v_mul_f32 v{vR+k}, v{vT+8}, v{vR+k}")
        a(f"v_exp_f32 v{vR+k}, v{vR+k}")
    a("s_nop 0")
    for j in range(4):
        for k in range(8):
            wsc(W_SBF, k*4+j)
            if k == 0:
                a(f"v_mul_f32 v{vRS+j}, s{S_W}, v{vR+k}")
            else:
                a(f"v_fmac_f32 v{vRS+j}, s{S_W}, v{vR+k}")
            wsc(W_RBF, k*4+j)
            if k == 0:
                a(f"v_mul_f32 v{vRW+j}, s{S_W}, v{vR+k}")
            else:
                a(f"v_fmac_f32 v{vRW+j}, s{S_W}, v{vR+k}")
    vA = vT + 10
    for j in range(4):
        for i in range(4):
            wsc(W_DN, i*4+j)
            if i == 0:
                a(f"v_mul_f32 v{vA+j}, s{S_W}, v{vS+2*i}")
            else:
                a(f"v_fmac_f32 v{vA+j}, s{S_W}, v{vS+2*i}")
        a(f"v_mul_f32 v{vA+j}, v{vRS+j}, v{vA+j}")
    vU = vT + 14
    for j in range(4):
        for i in range(4):
            wsc(W_UP, i*4+j)
            if i == 0:
                a(f"v_mul_f32 v{vU+j}, s{S_W}, v{vA+i}")
            else:
                a(f"v_fmac_f32 v{vU+j}, s{S_W}, v{vA+i}")
    vF = vT + 18
    a(f"v_lshlrev_b32 v{vF}, 16, v{vMm}")
    a(f"v_and_b32 v{vF+1}, s{S_HI}, v{vMm}")
    a(f"v_lshlrev_b32 v{vF+2}, 16, v{vMm+1}")
    a(f"v_and_b32 v{vF+3}, s{S_HI}, v{vMm+1}")
    for j in range(4):
        a(f"v_fmac_f32 v{vF+j}, v{vU+j}, v{vRW+j}")
    a(f"v_cvt_pk_bf16_f32 v{vF+4}, v{vF}, v{vF+1}")
    a(f"v_cvt_pk_bf16_f32 v{vF+5}, v{vF+2}, v{vF+3}")
    a(f"buffer_store_dwordx2 {vr(vF+4,2)}, v{vE}, {sr(S_O,4)}, 0 offen")
    a(f"s_add_u32 s{S_K}, s{S_K}, 16")
    a(f"s_cmp_lt_u32 s{S_K}, 49")
    a("s_cbranch_scc1 P_ep")
    a.lab("P_end")
    a("s_endpgm")
    return a.text(), LDS_BYTES, 96, 100

HEADER = """; Kernarg layout for this problem (112 bytes, ptrs only, base s[0:1]):
"""

def build(cfg):
    pa, lds_a, va, sa = gen_part(cfg)
    pb, lds_b, vb, sb = gen_acc(cfg)
    out = HEADER
    out += f"; @launch kernel=part_kernel grid=({NWG},1,1) block=(1024,1,1) lds={lds_a}\n"
    out += f"; @launch kernel=acc_kernel grid=({NWG},1,1) block=(1024,1,1) lds={lds_b}\n"
    out += '.amdgcn_target "amdgcn-amd-amdhsa--gfx950"\n.text\n'
    for name, body in (("part_kernel", pa), ("acc_kernel", pb)):
        out += f".globl {name}\n.p2align 8\n.type {name},@function\n{body}"
    out += '.section .rodata,"a"\n'
    for name, v, s in (("part_kernel", va, sa), ("acc_kernel", vb, sb)):
        acc = (v + 3)//4*4
        out += f""".p2align 6
.amdhsa_kernel {name}
  .amdhsa_next_free_vgpr {v}
  .amdhsa_next_free_sgpr {s}
  .amdhsa_accum_offset {acc}
  .amdhsa_group_segment_fixed_size 0
  .amdhsa_kernarg_size 112
  .amdhsa_user_sgpr_count 2
  .amdhsa_user_sgpr_kernarg_segment_ptr 1
  .amdhsa_system_sgpr_workgroup_id_x 1
  .amdhsa_float_denorm_mode_32 3
.end_amdhsa_kernel
"""
    return out, lds_a, lds_b

if __name__ == "__main__":
    cfg = Cfg()
    outp = sys.argv[1] if len(sys.argv) > 1 else "gather_scatter__molecular_angular_gemnet__graph.s"
    for kv in sys.argv[2:]:
        k, v = kv.split("=", 1)
        cur = getattr(cfg, k)
        setattr(cfg, k, type(cur)(v) if not isinstance(cur, str) else (" " + v if v else ""))
    txt, la, lb = build(cfg)
    open(outp, "w").write(txt)
    print("wrote", outp, len(txt), "bytes; lds", la, lb)
```
